```python
import torch

def _softmax(x, axis=-1):
    return torch.softmax(x, dim=axis)
def _gelu(x):
    return torch.nn.functional.gelu(x, approximate="tanh")
def _silu(x):
    return torch.nn.functional.silu(x)
def _sigmoid(x):
    return torch.sigmoid(x)
def _layernorm(x, axis=-1, eps=1e-5):
    m = x.mean(dim=axis, keepdim=True)
    v = x.var(dim=axis, keepdim=True, unbiased=False)
    return (x - m) / torch.sqrt(v + eps)
def _scatter_add(tgt, idx, src, axis=0):
    return tgt.clone().index_add_(axis, idx, src)
def _segment_sum(src, seg, n):
    out = torch.zeros((n,) + src.shape[1:], dtype=src.dtype)
    return out.index_add_(0, seg, src)
def _pad(x, pw):
    flat = tuple(v for pair in reversed(pw) for v in pair)
    return torch.nn.functional.pad(x, flat)

kernel_name = 'standalone__paged_block_table_kv_pagedattention__decode'

def setup_inputs():

    _w = (lambda a: (lambda t: t.to(torch.bfloat16) if t.is_floating_point() else t)(torch.as_tensor(a)))
    B, Hq, Hkv, Sq, Skv, D = 2, 32, 32, 1, 8192, 128
    bs = 16
    nbps = max(1, Skv // bs)
    num_phys = B * nbps + 4
    bt = torch.randperm(num_phys)[: B * nbps].reshape(B, nbps).to(torch.int64)
    cl = (nbps * bs - (torch.arange(1, B + 1, dtype=torch.int64) * 2654435761) % max(1, nbps * bs // 2)).to(torch.int64)
    return {
        "q": _w((lambda *s: torch.randn(*s, dtype=torch.bfloat16) * 0.8)(B, Hq, Sq, D)),
        "k_cache": _w((lambda *s: torch.randn(*s, dtype=torch.bfloat16) * 0.8)(num_phys, bs, Hkv, D)),
        "v_cache": _w((lambda *s: torch.randn(*s, dtype=torch.bfloat16) * 0.05)(num_phys, bs, Hkv, D)),
        "block_table": _w(bt),
        "context_lens": _w(cl),
    }

def reference(q, k_cache, v_cache, block_table, context_lens):
    B, Hq, Sq, D = q.shape
    bs = k_cache.shape[1]
    Hkv = k_cache.shape[2]
    nbps = block_table.shape[1]
    Skv = nbps * bs
    bt = block_table.reshape(-1)
    k = (lambda x, *d: x.permute(*d))(k_cache[bt].reshape(B, Skv, Hkv, D), 0, 2, 1, 3)
    v = (lambda x, *d: x.permute(*d))(v_cache[bt].reshape(B, Skv, Hkv, D), 0, 2, 1, 3)
    g = Hq // Hkv
    qg = q.reshape(B, Hkv, g, Sq, D)
    scores = torch.einsum("bhgqd,bhkd->bhgqk", qg, k) * (D ** -0.5)
    pos = torch.arange(Skv)
    msk = pos[None, :] < context_lens[:, None]
    scores = torch.where(msk[:, None, None, None, :], scores, -1e9)
    p = _softmax(scores, axis=-1)
    out = torch.einsum("bhgqk,bhkd->bhgqd", p, v)
    return out.reshape(B, Hq, Sq, D)
```

```python
import sys
NT = " nt" if len(sys.argv) > 2 and sys.argv[2] == "nt" else ""
G = 8
out = []
def e(s=""): out.append(s)

HEADER = open('standalone__paged_block_table_kv_pagedattention__decode.s.ref').read().split('; Override launch')[0]
e(HEADER.rstrip())
e("; @launch kernel=pa_part_kernel grid=(256,1,1) block=(1024,1,1) lds=37376")
e("; @launch kernel=pa_comb_kernel grid=(64,1,1) block=(128,1,1) lds=0")
e('.amdgcn_target "amdgcn-amd-amdhsa--gfx950"')
e(".text")
e(".globl pa_part_kernel")
e(".p2align 8")
e(".type pa_part_kernel,@function")
e("pa_part_kernel:")

KV_BYTES = 1028*16*32*128*2
ACC_BASE = 4096
ML_BASE = 4096 + 32768
SCALE2 = 0x3e0293ee
import struct, math
sc = (128 ** -0.5) * math.log2(math.e)
SCALE2 = struct.unpack('<I', struct.pack('<f', sc))[0]
NEG = struct.unpack('<I', struct.pack('<f', -1e30))[0]

vTID=0; vLANE=1; vOFF=2; vTOK=3; vM=4; vL=5; vSC=6; vMN=7; vCORR=8; vT0=9; vT1=10; vT2=11
vQ=12
vQB=16
vACC=20
vS=28
vK=36
vV=68
sOFFS=48
sBIAS=56
sWAVE=64; sHG=65; sR=66; sB=67; sN=68; sCNT=69; sNG=70; sG=71; sREM=72; sLANE=73; sMASK=74; sTMP=75; sTMP2=76; sB0=77; sSC=78
sN0=42; sN1=43; sV0=44; sV1=45; sNB0=46; sNB1=47; sR0=79; sRB=80; sNBB=81; sCB=82; sRR=83

e("  s_cmp_ge_u32 s2, 256")
e("  s_cbranch_scc1 L_part_end")
e("  s_load_dwordx16 s[16:31], s[0:1], 0")
e(f"  v_lshrrev_b32 v{vT0}, 6, v0")
e(f"  v_and_b32 v{vLANE}, 63, v0")
e(f"  v_lshlrev_b32 v{vT1}, 2, v0            ; tid*4")
e(f"  v_readfirstlane_b32 s{sWAVE}, v{vT0}")
e(f"  s_and_b32 s{sHG}, s2, 7")
e(f"  s_lshr_b32 s{sR}, s2, 3")
e(f"  s_lshl_b32 s{sTMP}, s{sHG}, 10")
e(f"  v_lshl_add_u32 v{vT2}, v{vLANE}, 4, s{sTMP}")
e(f"  v_add_u32 v{vT0}, 0x2000, v{vT2}")
e("  s_waitcnt lgkmcnt(0)")
e("  s_load_dwordx2 s[40:41], s[24:25], 0    ; context lens")
e(f"  global_load_dword v{vTOK}, v{vT1}, s[22:23]   ; block table entry tid")
e(f"  global_load_dwordx4 v[{vQ}:{vQ+3}], v{vT2}, s[16:17]")
e(f"  global_load_dwordx4 v[{vQB}:{vQB+3}], v{vT0}, s[16:17]")
e("  s_mov_b32 s32, s18")
e("  s_and_b32 s33, s19, 0xffff")
e(f"  s_mov_b32 s34, {KV_BYTES}")
e("  s_mov_b32 s35, 0x00020000")
e("  s_mov_b32 s36, s20")
e("  s_and_b32 s37, s21, 0xffff")
e(f"  s_mov_b32 s38, {KV_BYTES}")
e("  s_mov_b32 s39, 0x00020000")
e(f"  s_mov_b32 s{sMASK}, 0xffff0000")
e(f"  s_lshl_b32 s{sTMP}, s{sWAVE}, 13")
e(f"  v_add_u32 v{vOFF}, s{sTMP}, v{vT2}")
e(f"  v_mov_b32 v{vM}, {NEG:#x}")
e(f"  v_mov_b32 v{vL}, 0")
for k in range(8): e(f"  v_mov_b32 v{vACC+k}, 0")
e("  s_waitcnt vmcnt(2)")
e(f"  ds_write_b32 v{vT1}, v{vTOK}")
e("  s_waitcnt lgkmcnt(0)")
e(f"  s_cmp_gt_i32 s40, 0")
e(f"  s_cselect_b32 s{sN0}, s40, 8192")
e(f"  s_cselect_b32 s{sV0}, {SCALE2:#x}, 0")
e(f"  s_min_u32 s{sN0}, s{sN0}, 8192")
e(f"  s_cmp_gt_i32 s41, 0")
e(f"  s_cselect_b32 s{sN1}, s41, 8192")
e(f"  s_cselect_b32 s{sV1}, {SCALE2:#x}, 0")
e(f"  s_min_u32 s{sN1}, s{sN1}, 8192")
e(f"  s_add_u32 s{sNB0}, s{sN0}, 15")
e(f"  s_lshr_b32 s{sNB0}, s{sNB0}, 4")
e(f"  s_add_u32 s{sNB1}, s{sN1}, 15")
e(f"  s_lshr_b32 s{sNB1}, s{sNB1}, 4")
e(f"  s_add_u32 s{sTMP}, s{sNB0}, s{sNB1}")
e(f"  s_lshl_b32 s{sTMP2}, s{sNB0}, 5")
e(f"  v_cvt_f32_u32 v{vT0}, s{sTMP}")
e(f"  v_cvt_f32_u32 v{vT2}, s{sTMP2}")
e(f"  v_rcp_f32 v{vT0}, v{vT0}")
e("  s_nop 0")
e(f"  v_fma_f32 v{vT0}, v{vT0}, v{vT2}, 0.5")
e(f"  v_cvt_u32_f32 v{vT0}, v{vT0}")
e("  s_nop 0")
e(f"  v_readfirstlane_b32 s{sR0}, v{vT0}")
e("  s_nop 3")
e(f"  s_max_u32 s{sR0}, s{sR0}, 1")
e(f"  s_min_u32 s{sR0}, s{sR0}, 31")
e(f"  s_sub_u32 s{sTMP}, 32, s{sR0}          ; R1")
e(f"  s_sub_u32 s{sTMP2}, s{sR}, s{sR0}       ; r - R0")
e(f"  s_cmp_ge_u32 s{sR}, s{sR0}")
e(f"  s_cselect_b32 s{sB}, 1, 0")
e(f"  s_cselect_b32 s{sRB}, s{sTMP2}, s{sR}")
e(f"  s_cselect_b32 s{sRR}, s{sTMP}, s{sR0}")
e(f"  s_cselect_b32 s{sN}, s{sN1}, s{sN0}")
e(f"  s_cselect_b32 s{sNBB}, s{sNB1}, s{sNB0}")
e(f"  s_cselect_b32 s{sSC}, s{sV1}, s{sV0}")
e(f"  v_cvt_f32_u32 v{vT0}, s{sRR}")
e(f"  v_cvt_f32_u32 v{vT2}, s{sNBB}")
e(f"  v_rcp_f32 v{vT0}, v{vT0}")
e("  s_nop 0")
e(f"  v_mul_f32 v{vT0}, v{vT0}, v{vT2}")
e(f"  v_cvt_u32_f32 v{vT0}, v{vT0}")
e("  s_nop 0")
e(f"  v_readfirstlane_b32 s{sCB}, v{vT0}")
e("  s_nop 3")
e(f"  s_max_u32 s{sCB}, s{sCB}, 1")
e(f"  s_sub_u32 s{sCB}, s{sCB}, 1")
for _ in range(3):
    e(f"  s_mul_i32 s{sTMP}, s{sCB}, s{sRR}")
    e(f"  s_cmp_lt_u32 s{sTMP}, s{sNBB}")
    e(f"  s_addc_u32 s{sCB}, s{sCB}, 0")
e(f"  s_mul_i32 s{sB0}, s{sRB}, s{sCB}")
e(f"  s_sub_u32 s{sTMP}, s{sN}, s{sWAVE}")
e(f"  s_add_u32 s{sTMP}, s{sTMP}, 15")
e(f"  s_lshr_b32 s{sTMP}, s{sTMP}, 4")
e(f"  s_add_u32 s{sTMP2}, s{sB0}, s{sCB}")
e(f"  s_min_u32 s{sTMP}, s{sTMP}, s{sTMP2}")
e(f"  s_sub_i32 s{sCNT}, s{sTMP}, s{sB0}")
e(f"  s_max_i32 s{sCNT}, s{sCNT}, 0")
e(f"  s_add_u32 s{sNG}, s{sCNT}, {G-1}")
e(f"  s_lshr_b32 s{sNG}, s{sNG}, 3")
e(f"  v_mov_b32 v{vSC}, s{sSC}")
e(f"  s_lshl_b32 s{sTMP}, s{sB}, 9")
e(f"  s_add_u32 s{sTMP}, s{sTMP}, s{sB0}")
e(f"  v_add_u32 v{vT0}, s{sTMP}, v{vLANE}")
e(f"  v_min_u32 v{vT0}, 1023, v{vT0}")
e(f"  v_lshlrev_b32 v{vT0}, 2, v{vT0}")
e("  s_barrier")
e(f"  ds_read_b32 v{vTOK}, v{vT0}")
e(f"  v_cmp_gt_u32 vcc, s{sCNT}, v{vLANE}")
e(f"  v_mov_b32 v{vT1}, 0xf0000000")
e("  s_waitcnt lgkmcnt(0)")
e(f"  v_lshlrev_b32 v{vTOK}, 17, v{vTOK}")
e(f"  v_cndmask_b32 v{vTOK}, v{vT1}, v{vTOK}, vcc")
e("  s_waitcnt vmcnt(0)")
e(f"  s_cmp_eq_u32 s{sB}, 0")
e("  s_cbranch_scc1 L_qsel")
for k in range(4): e(f"  v_mov_b32 v{vQ+k}, v{vQB+k}")
e("L_qsel:")
e(f"  s_cmp_eq_u32 s{sNG}, 0")
e("  s_cbranch_scc1 L_loop_done")
for j in range(G): e(f"  v_readlane_b32 s{sOFFS+j}, v{vTOK}, {j}")
e("  s_nop 4")
for j in range(G): e(f"  buffer_load_dwordx4 v[{vK+4*j}:{vK+4*j+3}], v{vOFF}, s[32:35], s{sOFFS+j} offen{NT}")
for j in range(G): e(f"  buffer_load_dwordx4 v[{vV+4*j}:{vV+4*j+3}], v{vOFF}, s[36:39], s{sOFFS+j} offen{NT}")
e(f"  s_mov_b32 s{sG}, 0")
e(f"  s_mov_b32 s{sREM}, s{sCNT}")
e(f"  s_mov_b32 s{sLANE}, {G}")
e("L_loop:")
for j in range(G):
    e(f"  v_readlane_b32 s{sOFFS+j}, v{vTOK}, s{sLANE}")
    e(f"  s_add_u32 s{sLANE}, s{sLANE}, 1")
for j in range(G):
    e(f"  s_cmp_gt_i32 s{sREM}, {j}")
    e(f"  s_cselect_b32 s{sBIAS+j}, 0, {NEG:#x}")
e(f"  s_waitcnt vmcnt({G})")
for st in range(4):
    for j in range(G):
        if st == 0:
            e(f"  v_dot2_f32_bf16 v{vS+j}, v{vK+4*j}, v{vQ}, 0")
        else:
            e(f"  v_dot2c_f32_bf16 v{vS+j}, v{vK+4*j+st}, v{vQ+st}")
for j in range(G): e(f"  buffer_load_dwordx4 v[{vK+4*j}:{vK+4*j+3}], v{vOFF}, s[32:35], s{sOFFS+j} offen{NT}")
for r in (8,4,2,1):
    for j in range(G):
        e(f"  v_add_f32_dpp v{vS+j}, v{vS+j}, v{vS+j} row_ror:{r} row_mask:0xf bank_mask:0xf")
for j in range(G):
    e(f"  v_fma_f32 v{vS+j}, v{vS+j}, v{vSC}, s{sBIAS+j}")
e(f"  v_max3_f32 v{vMN}, v{vM}, v{vS}, v{vS+1}")
for j in range(2, G, 2):
    e(f"  v_max3_f32 v{vMN}, v{vMN}, v{vS+j}, v{vS+j+1}")
e(f"  v_sub_f32 v{vCORR}, v{vM}, v{vMN}")
for j in range(G):
    e(f"  v_sub_f32 v{vS+j}, v{vS+j}, v{vMN}")
e(f"  v_exp_f32 v{vCORR}, v{vCORR}")
for j in range(G):
    e(f"  v_exp_f32 v{vS+j}, v{vS+j}")
e(f"  v_mov_b32 v{vM}, v{vMN}")
e(f"  v_mul_f32 v{vL}, v{vL}, v{vCORR}")
for k in range(8):
    e(f"  v_mul_f32 v{vACC+k}, v{vACC+k}, v{vCORR}")
for j in range(G):
    e(f"  v_add_f32 v{vL}, v{vL}, v{vS+j}")
e(f"  s_waitcnt vmcnt({G})")
for j in range(G):
    for w in range(4):
        e(f"  v_lshlrev_b32 v{vT0}, 16, v{vV+4*j+w}")
        e(f"  v_and_b32 v{vT1}, s{sMASK}, v{vV+4*j+w}")
        e(f"  v_fmac_f32 v{vACC+2*w}, v{vT0}, v{vS+j}")
        e(f"  v_fmac_f32 v{vACC+2*w+1}, v{vT1}, v{vS+j}")
for j in range(G): e(f"  buffer_load_dwordx4 v[{vV+4*j}:{vV+4*j+3}], v{vOFF}, s[36:39], s{sOFFS+j} offen{NT}")
e(f"  s_sub_i32 s{sREM}, s{sREM}, {G}")
e(f"  s_add_u32 s{sG}, s{sG}, 1")
e(f"  s_cmp_lt_u32 s{sG}, s{sNG}")
e("  s_cbranch_scc1 L_loop")
e("L_loop_done:")
e("  s_waitcnt vmcnt(0)")
e(f"  v_lshlrev_b32 v{vT0}, 5, v0       ; tid*32")
e(f"  ds_write_b128 v{vT0}, v[{vACC}:{vACC+3}] offset:{ACC_BASE}")
e(f"  ds_write_b128 v{vT0}, v[{vACC+4}:{vACC+7}] offset:{ACC_BASE+16}")
e(f"  v_lshrrev_b32 v{vT1}, 4, v0")
e(f"  v_lshlrev_b32 v{vT1}, 3, v{vT1}")
e(f"  ds_write_b64 v{vT1}, v[{vM}:{vL}] offset:{ML_BASE}")
e("  s_waitcnt lgkmcnt(0)")
e("  s_barrier")
e(f"  s_cmp_ge_u32 s{sWAVE}, 8")
e("  s_cbranch_scc1 L_part_end")
vML=36
vA=68
e(f"  v_lshrrev_b32 v{vT0}, 7, v0       ; hh")
e(f"  v_lshlrev_b32 v{vT1}, 3, v{vT0}      ; hh*8")
e(f"  v_lshlrev_b32 v{vT2}, 2, v0       ; tid*4")
for i in range(16):
    e(f"  ds_read_b64 v[{vML+2*i}:{vML+2*i+1}], v{vT1} offset:{ML_BASE+32*i}")
for i in range(16):
    e(f"  ds_read_b32 v{vA+i}, v{vT2} offset:{ACC_BASE+2048*i}")
e("  s_waitcnt lgkmcnt(0)")
e(f"  v_max3_f32 v{vMN}, v{vML}, v{vML+2}, v{vML+4}")
for i in range(3, 15, 2):
    e(f"  v_max3_f32 v{vMN}, v{vMN}, v{vML+2*i}, v{vML+2*i+2}")
e(f"  v_max_f32 v{vMN}, v{vMN}, v{vML+30}")
for i in range(16):
    e(f"  v_sub_f32 v{vML+2*i}, v{vML+2*i}, v{vMN}")
for i in range(16):
    e(f"  v_exp_f32 v{vML+2*i}, v{vML+2*i}")
e(f"  v_mov_b32 v{vL}, 0")
e(f"  v_mov_b32 v{vACC}, 0")
for i in range(16):
    e(f"  v_fmac_f32 v{vL}, v{vML+2*i}, v{vML+2*i+1}")
    e(f"  v_fmac_f32 v{vACC}, v{vML+2*i}, v{vA+i}")
e(f"  s_lshl_b32 s{sTMP}, s2, 11")
e(f"  v_add_u32 v{vT2}, s{sTMP}, v{vT2}")
e(f"  global_store_dword v{vT2}, v{vACC}, s[30:31]")
e(f"  v_mov_b32 v{vM}, v{vMN}")
e(f"  v_mov_b32 v{vL+1}, s{sB}")
e(f"  v_mov_b32 v{vL+2}, 0")
e(f"  s_lshl_b32 s{sTMP}, s2, 6")
e(f"  s_add_u32 s{sTMP}, s{sTMP}, 0x80000")
e(f"  v_lshl_add_u32 v{vT1}, v{vT0}, 4, s{sTMP}")
e(f"  v_and_b32 v{vT0}, 127, v0")
e(f"  v_cmp_eq_u32 vcc, 0, v{vT0}")
e("  s_and_saveexec_b64 s[84:85], vcc")
e(f"  global_store_dwordx4 v{vT1}, v[{vM}:{vM+3}], s[30:31]")
e("L_part_end:")
e("  s_endpgm")

e(".globl pa_comb_kernel")
e(".p2align 8")
e(".type pa_comb_kernel,@function")
e("pa_comb_kernel:")
e("  s_cmp_ge_u32 s2, 64")
e("  s_cbranch_scc1 L_comb_end")
e("  s_load_dwordx4 s[8:11], s[0:1], 40")
e("  s_load_dwordx2 s[12:13], s[0:1], 56    ; ws")
e("  s_lshr_b32 s3, s2, 5          ; b")
e("  s_and_b32 s4, s2, 31          ; h")
e("  s_lshr_b32 s5, s4, 2          ; hg")
e("  s_and_b32 s6, s4, 3           ; hh")
e("  s_lshl_b32 s7, s5, 11")
e("  s_lshl_b32 s14, s6, 9")
e("  s_add_u32 s7, s7, s14")
e("  v_lshl_add_u32 v1, v0, 2, s7")
e("  s_lshl_b32 s14, s4, 4")
e("  s_add_u32 s14, s14, 0x80000")
e("  v_mov_b32 v2, s14")
e("  s_waitcnt lgkmcnt(0)")
e("  s_mov_b32 s16, s12")
e("  s_and_b32 s17, s13, 0xffff")
e("  s_mov_b32 s18, 0x84000")
e("  s_mov_b32 s19, 0x00020000")
cML=8; cA=136
for r in range(32):
    e(f"  s_mov_b32 s{20+r}, {r*16384}")
for r in range(32):
    if r*512 < 4096:
        e(f"  buffer_load_dwordx3 v[{cML+4*r}:{cML+4*r+2}], v2, s[16:19], 0 offen offset:{r*512}")
    else:
        e(f"  s_mov_b32 s15, {(r*512)//4096*4096}")
        e(f"  buffer_load_dwordx3 v[{cML+4*r}:{cML+4*r+2}], v2, s[16:19], s15 offen offset:{(r*512)%4096}")
    e(f"  buffer_load_dword v{cA+r}, v1, s[16:19], s{20+r} offen")
e(f"  v_mov_b32 v3, {NEG:#x}")
e("  v_mov_b32 v4, v3")
e("  s_waitcnt vmcnt(0)")
for r in range(32):
    e(f"  v_cmp_eq_u32 vcc, s3, v{cML+4*r+2}")
    e("  s_nop 1")
    e(f"  v_cndmask_b32 v{cML+4*r}, v3, v{cML+4*r}, vcc")
    e(f"  v_cndmask_b32 v{cML+4*r+1}, 0, v{cML+4*r+1}, vcc")
    e(f"  v_cndmask_b32 v{cA+r}, 0, v{cA+r}, vcc")
    e(f"  v_max_f32 v4, v4, v{cML+4*r}")
for r in range(32):
    e(f"  v_sub_f32 v{cML+4*r}, v{cML+4*r}, v4")
for r in range(32):
    e(f"  v_exp_f32 v{cML+4*r}, v{cML+4*r}")
e("  v_mov_b32 v5, 0")
e("  v_mov_b32 v6, 0")
for r in range(32):
    e(f"  v_fmac_f32 v5, v{cML+4*r}, v{cML+4*r+1}")
    e(f"  v_fmac_f32 v6, v{cML+4*r}, v{cA+r}")
e("  v_rcp_f32 v5, v5")
e("  s_nop 0")
e("  v_mul_f32 v6, v6, v5")
e("  v_cvt_pk_bf16_f32 v6, v6, v6")
e("  s_lshl_b32 s7, s2, 8")
e("  v_lshl_add_u32 v1, v0, 1, s7")
e("  global_store_short v1, v6, s[8:9]")
e("L_comb_end:")
e("  s_endpgm")

e('.section .rodata,"a"')
for name, vg in (("pa_part_kernel", 100), ("pa_comb_kernel", 168)):
    e(".p2align 6")
    e(f".amdhsa_kernel {name}")
    e(f"  .amdhsa_next_free_vgpr {vg}")
    e("  .amdhsa_next_free_sgpr 96")
    e(f"  .amdhsa_accum_offset {(vg+3)//4*4}")
    e("  .amdhsa_group_segment_fixed_size 0")
    e("  .amdhsa_kernarg_size 64")
    e("  .amdhsa_user_sgpr_count 2")
    e("  .amdhsa_user_sgpr_kernarg_segment_ptr 1")
    e("  .amdhsa_system_sgpr_workgroup_id_x 1")
    e(".end_amdhsa_kernel")
open(sys.argv[1], 'w').write("\n".join(out) + "\n")
```
